```python
import torch

def _softmax(x, axis=-1):
    return torch.softmax(x, dim=axis)
def _gelu(x):
    return torch.nn.functional.gelu(x, approximate="tanh")
def _silu(x):
    return torch.nn.functional.silu(x)
def _sigmoid(x):
    return torch.sigmoid(x)
def _layernorm(x, axis=-1, eps=1e-5):
    m = x.mean(dim=axis, keepdim=True)
    v = x.var(dim=axis, keepdim=True, unbiased=False)
    return (x - m) / torch.sqrt(v + eps)
def _scatter_add(tgt, idx, src, axis=0):
    return tgt.clone().index_add_(axis, idx, src)
def _segment_sum(src, seg, n):
    out = torch.zeros((n,) + src.shape[1:], dtype=src.dtype)
    return out.index_add_(0, seg, src)
def _pad(x, pw):
    flat = tuple(v for pair in reversed(pw) for v in pair)
    return torch.nn.functional.pad(x, flat)

kernel_name = 'parallel_sum__grouped_kv_mqa__dense_activation_squared_relu__prompt'

def setup_inputs():

    _w = (lambda a: (lambda t: t.to(torch.bfloat16) if t.is_floating_point() else t)(torch.as_tensor(a)))
    def _A_setup():
        B, S, D, H = 1, 2048, 512, 32
        Dh = D // H
        return {
            "x": _w((lambda *s: torch.randn(*s, dtype=torch.bfloat16) * 0.05)(B, S, D)),
            "wq": _w((lambda *s: torch.randn(*s, dtype=torch.bfloat16) * 0.2)(D, H * Dh)),
            "wk": _w((lambda *s: torch.randn(*s, dtype=torch.bfloat16) * 0.2)(D, Dh)),
            "wv": _w((lambda *s: torch.randn(*s, dtype=torch.bfloat16) * 0.1)(D, Dh)),
            "wo": _w((lambda *s: torch.randn(*s, dtype=torch.bfloat16) * 0.1)(H * Dh, D)),
        }
    _A_in = _A_setup()

    def _B_setup():
        B, S, D, F = 1, 2048, 512, 1376
        return {
            "x": _w((lambda *s: torch.randn(*s, dtype=torch.bfloat16) * 0.05)(B, S, D)),
            "w1": _w((lambda *s: torch.randn(*s, dtype=torch.bfloat16) * 0.05)(D, F)),
            "b1": _w((lambda *s: torch.randn(*s, dtype=torch.bfloat16) * 1.6)(F)),
            "w2": _w((lambda *s: torch.randn(*s, dtype=torch.bfloat16) * 0.05)(F, D)),
            "b2": _w((lambda *s: torch.randn(*s, dtype=torch.bfloat16) * 6.4)(D)),
        }
    _B_in = _B_setup()

    return {
        "A_x": _A_in["x"],
        "A_wq": _A_in["wq"],
        "A_wk": _A_in["wk"],
        "A_wv": _A_in["wv"],
        "A_wo": _A_in["wo"],
        "B_x": _B_in["x"],
        "B_w1": _B_in["w1"],
        "B_b1": _B_in["b1"],
        "B_w2": _B_in["w2"],
        "B_b2": _B_in["b2"],
    }

def reference(A_x, A_wq, A_wk, A_wv, A_wo, B_x, B_w1, B_b1, B_w2, B_b2):
    def _A_ref(x, wq, wk, wv, wo):
        B, S, D = x.shape
        H = 32
        Dh = D // H
        q = (lambda x, *d: x.permute(*d))((x @ wq).reshape(B, S, H, Dh), 0, 2, 1, 3)
        k = x @ wk
        v = x @ wv
        scores = torch.einsum("bhqd,bkd->bhqk", q, k) * (Dh ** -0.5)
        p = _softmax(scores, axis=-1)
        o = torch.einsum("bhqk,bkd->bhqd", p, v)
        return (lambda x, *d: x.permute(*d))(o, 0, 2, 1, 3).reshape(B, S, H * Dh) @ wo

    def _B_ref(x, w1, b1, w2, b2):
        h = torch.einsum("bsd,df->bsf", x, w1) + b1
        zero = torch.zeros_like(h)
        r = torch.where(h > zero, h, zero)
        h = r * r
        out = torch.einsum("bsf,fd->bsd", h, w2) + b2
        return out

    x = A_x
    xn = _layernorm(x, axis=-1)
    return x + _A_ref(xn, A_wq, A_wk, A_wv, A_wo) + _B_ref(xn, B_w1, B_b1, B_w2, B_b2)
```

```python
import sys, os, subprocess, struct, ctypes
sys.path.insert(0, 'cdna_kernels')
import numpy as np
from mbcommon import HEAD, meta
def kern(name, nins):
    body = "\n".join(f"    v_add_u32 v{2 + (i % 32)}, 0x12345678, v{2 + (i % 32)}" for i in range(nins))
    return f"""
.globl {name}
.p2align 8
.type {name},@function
{name}:
    s_memtime s[12:13]
    s_memrealtime s[24:25]
    s_load_dwordx2 s[4:5], s[0:1], 0
    s_waitcnt lgkmcnt(0)
    s_memtime s[16:17]
    s_mov_b32 s8, s4
    s_mov_b32 s9, s5
    s_mov_b32 s10, 0x4000000
    s_mov_b32 s11, 0x00020000
    s_lshl_b32 s3, s2, 16
    s_add_u32 s3, s3, 0x100000
    v_lshlrev_b32 v1, 4, v0
    s_waitcnt lgkmcnt(0)
    buffer_load_dwordx4 v[40:43], v1, s[8:11], s3 offen
    s_waitcnt vmcnt(0)
    s_memtime s[18:19]
    s_waitcnt lgkmcnt(0)
{body}
    s_memtime s[14:15]
    s_memrealtime s[26:27]
    s_waitcnt lgkmcnt(0)
    s_sub_u32 s14, s14, s18
    s_sub_u32 s18, s18, s16
    s_sub_u32 s16, s16, s12
    v_mov_b32 v4, s16
    v_mov_b32 v5, s18
    v_mov_b32 v6, s14
    v_mov_b32 v7, s24
    s_lshl_b32 s3, s2, 5
    v_mov_b32 v0, s3
    buffer_store_dwordx4 v[4:7], v0, s[8:11], 0 offen
    v_mov_b32 v4, s26
    buffer_store_dword v4, v0, s[8:11], 0 offen offset:16
    s_waitcnt vmcnt(0)
    s_endpgm
.section .rodata,"a"
.p2align 6
.amdhsa_kernel {name}
  .amdhsa_next_free_vgpr 64
  .amdhsa_next_free_sgpr 60
  .amdhsa_accum_offset 64
  .amdhsa_group_segment_fixed_size 0
  .amdhsa_kernarg_size 8
  .amdhsa_user_sgpr_count 2
  .amdhsa_user_sgpr_kernarg_segment_ptr 1
  .amdhsa_system_sgpr_workgroup_id_x 1
.end_amdhsa_kernel
.text
"""
sizes = [0, 128, 512, 2048]
names = [f"k{n}_kernel" for n in sizes]
src = HEAD + "".join(kern(nm, n) for nm, n in zip(names, sizes)) + meta(names, 64)
open('mb5.s', 'w').write(src)
r = subprocess.run(["clang", "-x", "assembler", "-target", "amdgcn-amd-amdhsa", "-mcpu=gfx950", "mb5.s", "-o", "mb5.co"], capture_output=True, text=True)
if r.returncode: print(r.stderr[:3000]); sys.exit(1)
if not os.path.exists('/dev/kfd'): print("assembled"); sys.exit(0)
import cdna_launch as cl
hip = cl._hip
buf = cl.DeviceBuffer(64 << 20)
big = cl.DeviceBuffer(1024 << 20)
ev0 = ctypes.c_void_p(); ev1 = ctypes.c_void_p()
hip.hipEventCreate(ctypes.byref(ev0)); hip.hipEventCreate(ctypes.byref(ev1))
mod = cl.AsmKernel('mb5.co', names[0], check=False)
ka = struct.pack("<Q", buf.ptr)
for nm, n in zip(names, sizes):
    f = mod.function(nm)
    for mode in ('first', 'warm', 'warm', 'flush', 'flush'):
        if mode == 'flush':
            hip.hipMemset(ctypes.c_void_p(big.ptr), 1, 1024 << 20)
        hip.hipDeviceSynchronize()
        hip.hipEventRecord(ev0, None)
        cl._launch_function(f, (256, 1, 1), (512, 1, 1), ka, 96 * 1024, None)
        hip.hipEventRecord(ev1, None)
        hip.hipDeviceSynchronize()
        ms = ctypes.c_float()
        hip.hipEventElapsedTime(ctypes.byref(ms), ev0, ev1)
        o = buf.to_numpy(np.uint32, (256, 8))
        t0 = o[:, 3].astype(np.int64); t1 = o[:, 4].astype(np.int64)
        print(f"{nm:14s} {mode:6s} kernarg: med {np.median(o[:,0]):6.0f} max {o[:,0].max():6d} | load: med {np.median(o[:,1]):6.0f} max {o[:,1].max():6d} | body({n*8}B): med {np.median(o[:,2]):6.0f} max {o[:,2].max():6d} | start spread {(t0.max()-t0.min())*10}ns total {(t1.max()-t0.min())*10}ns | event {ms.value*1e3:.1f}us")
```

```python
import math
NAME = "parallel_sum__grouped_kv_mqa__dense_activation_squared_relu__prompt"
HEADER = """; Kernarg layout for this problem (104 bytes, ptrs only, base s[0:1]):
"""

class Asm:
    def __init__(self):
        self.lines = []
        self.vm = []
        self.ntok = 0
    def __call__(self, s):
        for ln in s.strip('\n').split('\n'):
            ln = ln.strip()
            if not ln: continue
            if ln.endswith(':') or ln.startswith('.'): self.lines.append(ln)
            else: self.lines.append('    ' + ln)
    def label(self, l): self.lines.append(l + ':')
    def c(self, s): self.lines.append('    ; ' + s)
    def vmem(self, s):
        self(s)
        self.ntok += 1
        self.vm.append(self.ntok)
        return self.ntok
    def vwait(self, tok, extra=''):
        if tok not in self.vm:
            if extra: self('s_waitcnt ' + extra)
            return
        i = self.vm.index(tok)
        n = len(self.vm) - 1 - i
        assert n <= 63
        self(f's_waitcnt vmcnt({n}) {extra}'.strip())
        self.vm = self.vm[i + 1:]
    def vreset(self): self.vm = []
    def text(self): return '\n'.join(self.lines) + '\n'

def vr(b, n=1):
    return f'v{b}' if n == 1 else f'v[{b}:{b+n-1}]'
def ar(b, n=1):
    return f'a{b}' if n == 1 else f'a[{b}:{b+n-1}]'
def sr(b, n=1):
    return f's{b}' if n == 1 else f's[{b}:{b+n-1}]'

def f32hex(x):
    import struct
    return '0x%08x' % struct.unpack('<I', struct.pack('<f', x))[0]

def srd(a, d, base, nbytes):
    a(f's_mov_b32 s{d}, s{base}')
    a(f's_and_b32 s{d+1}, s{base+1}, 0xffff')
    a(f's_mov_b32 s{d+2}, {nbytes}')
    a(f's_mov_b32 s{d+3}, 0x00020000')

def kernel_begin(a, name):
    a(f'.globl {name}\n.p2align 8\n.type {name},@function\n{name}:')

def kd(name, nv, ns, acc):
    return f""".section .rodata,"a"
.p2align 6
.amdhsa_kernel {name}
  .amdhsa_next_free_vgpr {nv}
  .amdhsa_next_free_sgpr {ns}
  .amdhsa_accum_offset {acc}
  .amdhsa_group_segment_fixed_size 0
  .amdhsa_kernarg_size 104
  .amdhsa_user_sgpr_count 2
  .amdhsa_user_sgpr_kernarg_segment_ptr 1
  .amdhsa_system_sgpr_workgroup_id_x 1
.end_amdhsa_kernel
.text
"""
WS_KV = 0
WS_Q  = 0x40000
WS_O  = WS_Q + 0x200000
WS_H  = WS_O + 0x200000
WS_FL = WS_H + 64 * 86 * 1024
WS_EP = WS_FL
WS_FH = WS_FL + 0x1000
WS_FKV = WS_FL + 0x4000
WS_END = WS_FL + 0x20000
QSCALE = 0.25 * math.log2(math.e)

STAMP = False
STAMP_OFF = 64 << 20
def stamp(a, i, cyc=False):
    import common
    if not common.STAMP: return
    a(f's_{"memtime" if cyc else "memrealtime"} s[{70+2*i}:{71+2*i}]')
def stamp_dump(a, n, kslot=0, ws=16, wave=46):
    import common
    if not common.STAMP: return
    a(f"""
    s_waitcnt lgkmcnt(0)
    s_mov_b32 s60, s{ws}
    s_and_b32 s61, s{ws+1}, 0xffff
    s_mov_b32 s62, 0x10000000
    s_mov_b32 s63, 0x00020000
    s_lshl_b32 s3, s2, 3
    s_add_u32 s3, s3, s{wave}
    s_lshl_b32 s3, s3, 6
    s_add_u32 s3, s3, {STAMP_OFF + kslot * 0x100000}
    v_mov_b32 v0, 0
    """)
    for i in range(n):
        a(f'v_mov_b32 v1, s{70+2*i}\nbuffer_store_dword v1, v0, s[60:63], s3 offen offset:{4*i}\ns_nop 1')
```

```python
import re, sys

TRANS = ('v_exp_f32','v_log_f32','v_rcp_f32','v_rsq_f32','v_sqrt_f32','v_sin_f32','v_cos_f32','v_rcp_iflag_f32','v_exp_f16','v_rcp_f16')

def regs_of(tok):
    tok = tok.strip()
    tok = re.sub(r'^-', '', tok)
    m = re.fullmatch(r'abs\((.*)\)', tok) or re.fullmatch(r'\|(.*)\|', tok)
    if m: tok = m.group(1)
    m = re.fullmatch(r'([vas])(\d+)', tok)
    if m: return [(m.group(1), int(m.group(2)))]
    m = re.fullmatch(r'([vas])\[(\d+):(\d+)\]', tok)
    if m: return [(m.group(1), i) for i in range(int(m.group(2)), int(m.group(3)) + 1)]
    if tok in ('vcc', 'vcc_lo', 'vcc_hi'): return [('x', 'vcc')]
    if tok in ('exec', 'exec_lo', 'exec_hi'): return [('x', 'exec')]
    if tok == 'm0': return [('x', 'm0')]
    return []

class Ins:
    def __init__(self, text, idx):
        self.text = text; self.idx = idx
        t = text.split(';')[0].strip()
        parts = t.split(None, 1)
        self.op = parts[0]
        rest = parts[1] if len(parts) > 1 else ''
        ops = []; cur = ''; d = 0
        for ch in rest:
            if ch in '[(': d += 1
            if ch in '])': d -= 1
            if ch == ',' and d == 0: ops.append(cur.strip()); cur = ''
            else: cur += ch
        if cur.strip(): ops.append(cur.strip())
        mods = ''
        if ops:
            sp = ops[-1].split(None, 1)
            if len(sp) > 1 and not ops[-1].startswith('abs('):
                ops[-1] = sp[0]; mods = sp[1]
        self.ops = ops; self.mods = mods
        op = self.op
        self.is_mfma = op.startswith('v_mfma') or op.startswith('v_smfmac')
        self.is_valu = op.startswith('v_') and not self.is_mfma
        self.is_vmem = op.startswith(('buffer_', 'global_', 'flat_'))
        self.is_ds = op.startswith('ds_')
        self.is_salu = op.startswith('s_')
        self.is_trans = any(op.startswith(x) for x in TRANS)
        self.is_dpp = 'dpp' in op or any(k in mods for k in ('quad_perm', 'row_shr', 'row_shl', 'row_ror', 'row_mirror', 'row_half_mirror', 'row_bcast', 'row_newbcast', 'wave_'))
        self.is_permlane = op.startswith('v_permlane')
        self.is_lds_dma = self.is_vmem and (re.search(r'\blds\b', mods) is not None or '_lds_' in op)
        R = [regs_of(o) for o in ops]
        self.w = []; self.r = []
        self.srcA = self.srcB = self.srcC = []
        if self.is_mfma:
            self.w = R[0]; self.srcA = R[1]; self.srcB = R[2]; self.srcC = R[3] if not op.startswith('v_smfmac') else R[0]
            self.r = R[1] + R[2] + R[3]
            self.passes = 8 if '32x32' in op else 4
        elif self.is_valu:
            if op.startswith('v_cmp'):
                self.w = R[0]; self.r = sum(R[1:], [])
                if op.startswith('v_cmpx'): self.w = self.w + [('x', 'exec')]
            elif op.startswith(('v_add_co', 'v_sub_co', 'v_addc_co', 'v_subb_co', 'v_subrev_co', 'v_mad_u64')):
                self.w = R[0] + R[1]; self.r = sum(R[2:], [])
            elif self.is_permlane and 'swap' in op:
                self.w = R[0] + R[1]; self.r = R[0] + R[1]
            elif op == 'v_nop': pass
            else:
                self.w = R[0]; self.r = sum(R[1:], [])
                if op.startswith(('v_fmac', 'v_mac', 'v_dot2c', 'v_pk_fmac')) or 'UNUSED_PRESERVE' in mods or self.is_dpp or op.startswith('v_writelane'):
                    self.r = self.r + R[0]
                if op.startswith('v_cndmask') and len(ops) == 3: self.r = self.r + [('x', 'vcc')]
        elif self.is_vmem:
            if 'store' in op or ('atomic' in op):
                self.r = sum(R, [])
                if op.startswith('buffer_'): self.data = R[0]
                else: self.data = R[1] if len(R[0]) and 'atomic' not in op or True else []
                if 'atomic' in op and 'sc0' in mods: self.w = R[0]
            elif self.is_lds_dma:
                self.r = sum(R, []) + [('x', 'm0')]
            elif op.startswith(('buffer_inv', 'buffer_wbl2')): pass
            else:
                self.w = R[0]; self.r = sum(R[1:], [])
        elif self.is_ds:
            if op.startswith(('ds_read', 'ds_bpermute', 'ds_permute', 'ds_swizzle')) or '_rtn' in op:
                self.w = R[0]; self.r = sum(R[1:], [])
            else:
                self.r = sum(R, [])
        elif self.is_salu:
            if op.startswith(('s_cmp', 's_cbranch', 's_branch', 's_waitcnt', 's_barrier', 's_nop', 's_endpgm', 's_setprio', 's_sleep', 's_bitcmp')):
                self.r = sum(R, [])
            else:
                self.w = R[0] if R else []; self.r = sum(R[1:], [])
                if 'saveexec' in op: self.w = self.w + [('x', 'exec')]
        self.states = 1
        if op == 's_nop': self.states = int(ops[0], 0) + 1
        self.wide_store = self.is_vmem and 'store' in op and ('x3' in op or 'x4' in op)

def need(p, c):
    n = 0
    pw = set(p.w); cr = set(c.r); cw = set(c.w)
    vec = lambda s: {x for x in s if x[0] in 'va'}
    if p.is_valu and not p.op.startswith('v_dot'):
        if c.is_mfma and vec(pw) & cr: n = max(n, 2)
    if p.is_valu and p.op.startswith('v_dot'):
        if vec(pw) & (cr | cw):
            if c.op == p.op:
                srcs = set(sum([regs_of(o) for o in c.ops[1:3]], []))
                if vec(pw) & srcs: n = max(n, 3)
            else: n = max(n, 3)
    if p.is_valu:
        if p.is_trans and c.is_valu and not c.is_trans and vec(pw) & cr: n = max(n, 1)
        if p.is_trans and c.is_mfma and vec(pw) & cr: n = max(n, 2)
        sw = {x for x in pw if x[0] == 's' or x == ('x', 'vcc')}
        if sw & cr:
            if c.is_vmem: n = max(n, 5)
            if c.is_valu:
                n = max(n, 4 if c.op.startswith(('v_readlane', 'v_writelane', 'v_div_fmas')) else 2)
        if vec(pw) & cr:
            if c.is_dpp: n = max(n, 2)
            if c.is_permlane: n = max(n, 2)
            if c.op.startswith(('v_readlane', 'v_readfirstlane')): n = max(n, 1)
        if ('x', 'exec') in pw:
            if c.is_dpp: n = max(n, 5)
            if c.is_mfma or c.is_permlane or c.op.startswith(('v_readlane', 'v_readfirstlane', 'v_writelane')): n = max(n, 4)
        if ('sdwa' in p.op or 'op_sel' in p.mods) and not p.op.startswith('v_pk') and c.is_valu and vec(pw) & (cr | cw): n = max(n, 1)
    if p.is_mfma:
        P = p.passes
        D = set(p.w)
        if c.is_mfma:
            if D & (set(c.srcA) | set(c.srcB)): n = max(n, {4: 8, 8: 12}[P])
            if D & set(c.srcC):
                if not (list(c.srcC) == list(p.w) and c.passes == P): n = max(n, {4: 6, 8: 10}[P])
            elif D & set(c.w):
                if not (list(c.w) == list(p.w) and c.passes == P): n = max(n, {4: 6, 8: 10}[P])
        elif (c.is_valu or c.is_vmem or c.is_ds) and D & (cr | cw):
            n = max(n, {4: 8, 8: 12}[P])
        if c.is_valu and set(p.srcC) & cw: n = max(n, {4: 3, 8: 7}[P])
        if (c.is_ds or c.is_vmem) and set(p.srcC) & cw: n = max(n, {4: 3, 8: 7}[P])
    if p.is_salu and ('x', 'm0') in pw and (c.is_lds_dma or 'addtid' in c.op): n = max(n, 1)
    if p.wide_store and set(p.data) & cw: n = max(n, 2 if c.is_valu else 1)
    return n

def check(asm_text, verbose=True):
    lines = asm_text.split('\n')
    ins = []; labels = {}
    intext = True
    for ln in lines:
        t = ln.split(';')[0].strip()
        if not t: continue
        if t.startswith('.section') or t.startswith('.amdhsa_kernel'): intext = False
        if t == '.text': intext = True; continue
        if t.startswith('.') and not t.endswith(':'): continue
        if not intext: continue
        if t.endswith(':'):
            labels[t[:-1]] = len(ins); continue
        ins.append(Ins(t, len(ins)))
    def succ(i):
        x = ins[i]
        if x.op == 's_endpgm': return []
        if x.op == 's_branch': return [labels[x.ops[0]]]
        if x.op.startswith('s_cbranch'): return [labels[x.ops[0]], i + 1]
        return [i + 1] if i + 1 < len(ins) else []
    errs = []
    MAXD = 13
    for i, p in enumerate(ins):
        if not (p.is_valu or p.is_mfma or p.wide_store or (p.is_salu and ('x', 'm0') in p.w)): continue
        stack = [(s, 0) for s in succ(i)]
        seen = {}
        while stack:
            j, dist = stack.pop()
            if j >= len(ins) or dist >= MAXD: continue
            if seen.get(j, 99) <= dist: continue
            seen[j] = dist
            c = ins[j]
            n = need(p, c)
            if n > dist: errs.append((p, c, n, dist))
            for s in succ(j): stack.append((s, dist + c.states))
    if verbose:
        for p, c, n, d in errs[:40]:
            print(f"HAZARD need {n} have {d}:\n    [{p.idx}] {p.text}\n    [{c.idx}] {c.text}")
        print(f"hazard check: {len(ins)} instrs, {len(errs)} violations")
    return errs

if __name__ == '__main__':
    check(open(sys.argv[1]).read())
```

```python
import sys
from common import *
import hazard, common

AUXW = 0; RING = 16384; XL = 81920; SCR = 147456
STATS = SCR; QL = SCR + 1024
STG = 131072
WOL = 98304
OFF = 100.0
VSC = 2.0 ** 24
SX, SW, SKV, SB, SWS, SOUT = 28, 32, 36, 40, 44, 48
G, J, W, TAG = 52, 53, 54, 55

def gen(a, FS=4, warm=True, prio='y31', flag_it=2):
    name = NAME + '_kernel'
    kernel_begin(a, name)
    a(f"""
    s_cmp_ge_u32 s2, 256
    s_cbranch_scc1 L_end
    s_load_dwordx8 s[4:11], s[0:1], 0
    s_load_dwordx2 s[26:27], s[0:1], 96
    s_load_dwordx8 s[16:23], s[0:1], 48
    s_load_dwordx2 s[12:13], s[0:1], 32
    s_load_dwordx2 s[24:25], s[0:1], 80
    """)
    stamp(a, 0); stamp(a, 6, True)
    a(f"""
    s_and_b32 s3, s2, 7
    s_lshr_b32 s{J}, s2, 3
    s_lshr_b32 s{G}, s{J}, 3
    s_lshl_b32 s3, s3, 2
    s_add_u32 s{G}, s{G}, s3
    s_and_b32 s{J}, s{J}, 7
    v_lshrrev_b32 v2, 6, v0
    v_and_b32 v1, 63, v0
    v_readfirstlane_b32 s{W}, v2
    v_lshlrev_b32 v2, 4, v1
    s_lshl_b32 s56, s{G}, 3
    s_add_u32 s56, s56, s{W}
    s_lshl_b32 s56, s56, 13
    s_lshl_b32 s57, s{W}, 13
    s_add_u32 s57, s57, {XL}
    s_and_b32 s3, s{W}, 1
    s_lshl_b32 s3, s3, 7
    v_xor_b32 v13, s3, v2
    s_mov_b32 m0, s57
    s_waitcnt lgkmcnt(0)
    s_add_u32 s58, s26, {WS_EP}
    s_addc_u32 s59, s27, 0
    s_load_dword s{TAG}, s[58:59], 0
    """)
    srd(a, SX, 4, 2097152)
    for i in range(8):
        if i == 4:
            a('s_add_u32 m0, s57, 4096\ns_add_u32 s56, s56, 4096')
        if i: a(f'v_xor_b32 v14, {i*16}, v13')
        a(f'buffer_load_dwordx4 v{14 if i else 13}, s[{SX}:{SX+3}], s56 offen offset:{(i&3)*1024} lds')
    a(f"""
    s_bitcmp1_b32 s{J}, 0
    s_cselect_b32 s{SKV}, s10, s8
    s_cselect_b32 s{SKV+1}, s11, s9
    s_and_b32 s{SKV+1}, s{SKV+1}, 0xffff
    s_movk_i32 s{SKV+2}, 16384
    s_mov_b32 s{SKV+3}, 0x00020000
    s_lshl_b32 s3, s{W}, 11
    s_mov_b32 m0, s3
    s_sub_u32 s60, s{J}, 5
    buffer_load_dwordx4 v2, s[{SKV}:{SKV+3}], s3 offen lds
    buffer_load_dwordx4 v2, s[{SKV}:{SKV+3}], s3 offen offset:1024 lds
    """)
    a(f"""
    s_max_i32 s60, s60, 0
    s_mul_i32 s3, s{J}, 5
    s_add_u32 s60, s60, s3           ; tile0_j
    s_lshr_b32 s61, s{W}, 1          ; pair p
    s_movk_i32 s62, 2752
    s_cmp_eq_u32 s61, 0
    s_cselect_b32 s{SW}, s6, s16
    s_cselect_b32 s{SW+1}, s7, s17
    s_cselect_b32 s62, 1024, s62     ; pitch
    s_lshl_b32 s{SW+2}, s62, 9
    s_and_b32 s{SW+1}, s{SW+1}, 0xffff
    s_mov_b32 s{SW+3}, 0x00020000
    s_lshl_b32 s3, s61, 1
    s_add_u32 s3, s3, s60
    s_sub_u32 s3, s3, 2
    s_lshl_b32 s3, s3, 6
    s_lshl_b32 s63, s{J}, 7
    s_cmp_eq_u32 s61, 0
    s_cselect_b32 s63, s63, s3
    v_lshrrev_b32 v10, 3, v1         ; r
    v_and_b32 v11, 7, v1             ; s
    v_lshrrev_b32 v12, 2, v11
    v_bfe_u32 v15, v10, 1, 1
    v_xor_b32 v12, v12, v15
    v_and_b32 v15, 3, v11
    v_lshlrev_b32 v15, 4, v15
    v_lshl_add_u32 v15, v12, 6, v15
    v_lshl_add_u32 v108, v10, 10, v15
    s_lshl_b32 s3, s{J}, 7
    v_add_u32 v108, s3, v108
    s_and_b32 s3, s{W}, 1
    s_lshl_b32 s3, s3, 4
    v_add_u32 v10, s3, v10
    v_mul_lo_u32 v3, v10, s62
    v_add3_u32 v3, v3, v15, s63
    s_cmp_lt_u32 s{J}, 5
    s_cselect_b32 s3, 3, 99
    s_cmp_eq_u32 s61, s3
    s_cselect_b32 s3, 30, 0
    s_cselect_b32 s64, 1, 0
    v_and_b32 v12, s64, v12
    v_lshl_add_u32 v3, v12, 30, v3
    s_lshl_b32 s64, s{W}, 11
    s_add_u32 s64, s64, {RING}
    s_mov_b32 s65, 0
    s_lshl_b32 s66, s62, 3
    s_lshl_b32 s67, s62, 5
    s_barrier
    """)
    def dma(slot):
        a(f"""
        s_add_u32 m0, s64, {slot*16384}
        s_nop 0
        buffer_load_dwordx4 v3, s[{SW}:{SW+3}], s65 offen lds
        s_add_u32 m0, s64, {slot*16384+1024}
        s_add_u32 s65, s65, s67
        buffer_load_dwordx4 v3, s[{SW}:{SW+3}], s66 offen lds
        s_add_u32 s66, s66, s67
        """)
    dma(0)
    srd(a, SB, 18, 2752)
    srd(a, SWS, 26, WS_END)
    a(f"""
    s_add_u32 s68, s60, s{W}
    s_sub_u32 s68, s68, 2
    s_lshl_b32 s3, s68, 6
    s_cmp_lt_u32 s{W}, 2
    s_cselect_b32 s3, 0x10000, s3
    v_lshrrev_b32 v14, 5, v1         ; h
    v_and_b32 v13, 31, v1            ; n
    v_lshlrev_b32 v15, 1, v13
    v_lshl_add_u32 v15, v14, 16, v15
    buffer_load_ushort v17, v15, s[{SB}:{SB+3}], s3 offen
    s_lshl_b32 s3, s{G}, 1
    s_and_b32 s69, s{W}, 1
    s_add_u32 s3, s3, s69
    s_lshl_b32 s3, s3, 5
    s_lshl_b32 s69, s{J}, 2
    s_add_u32 s3, s3, s69
    s_add_u32 s3, s3, s61
    s_lshl_b32 s69, s3, 10
    s_add_u32 s69, s69, {WS_O}       ; o slot
    v_mov_b32 v20, -1
    v_mov_b32 v21, -1
    v_mov_b32 v22, -1
    v_mov_b32 v23, -1
    buffer_store_dwordx4 v[20:23], v2, s[{SWS}:{SWS+3}], s69 offen sc1
    """)
    nx = 2
    dma(1); dma(2); dma(3)
    if warm:
        a(f"""
        s_and_b32 s3, s{G}, 3
        s_mul_i32 s3, s3, 96
        s_add_u32 s3, s3, 128
        v_add_u32 v18, s3, v1
        v_mul_lo_u32 v18, v18, s62
        s_and_b32 s3, s{W}, 1
        s_lshl_b32 s3, s3, 6
        s_add_u32 s3, s3, s63
        v_lshl_add_u32 v19, v14, 30, v18
        buffer_load_dword v24, v18, s[{SW}:{SW+3}], s3 offen
        s_lshl_b32 s58, s62, 6
        s_add_u32 s3, s3, s58
        buffer_load_dword v25, v19, s[{SW}:{SW+3}], s3 offen
        """)
    nw = 2 if warm else 0
    ACC = 64; F0 = 208; F1 = 232
    a(f"""
    v_and_b32 v15, 15, v1
    v_xor_b32 v15, v15, v14
    v_lshlrev_b32 v15, 4, v15
    v_lshl_add_u32 v4, v13, 10, v15
    v_add_u32 v4, {XL}, v4
    """)
    for s in range(1, 8): a(f'v_xor_b32 v{4+s}, {s*32}, v4')
    a(f"""
    v_bfe_u32 v15, v1, 2, 2          ; rr
    v_lshlrev_b32 v12, 7, v15
    v_lshrrev_b32 v15, 1, v15
    v_lshl_add_u32 v12, v15, 6, v12
    v_bfe_u32 v15, v1, 4, 1
    v_lshl_add_u32 v12, v15, 5, v12
    v_and_b32 v15, 3, v1
    v_lshl_add_u32 v12, v15, 3, v12
    v_lshl_add_u32 v109, v14, 9, v12
    v_lshl_add_u32 v12, v14, 10, v12
    s_and_b32 s3, s{W}, 1
    s_lshl_b32 s3, s3, 6
    v_xor_b32 v12, s3, v12
    s_lshl_b32 s3, s61, 12
    s_add_u32 s3, s3, {RING}
    v_add_u32 v12, s3, v12
    v_mov_b32 v16, 0
    s_mov_b32 s56, 0x3f803f80
    s_mov_b32 s57, 0xffff0000
    """)
    for r in range(32): a(f'v_mov_b32 v{ACC+r}, 0')
    a(f"""
    s_waitcnt lgkmcnt(0)
    s_mul_i32 s{TAG}, s{TAG}, 1664525
    s_add_u32 s{TAG}, s{TAG}, 1013904223
    s_waitcnt vmcnt({8+nx+nw})
    s_barrier
    """)
    stamp(a, 1)
    a(f"""
    s_cmp_ge_u32 s{W}, 4
    s_cbranch_scc1 A_nostat
    v_lshrrev_b32 v20, 2, v1
    s_lshl_b32 s3, s{W}, 4
    v_add_u32 v20, s3, v20           ; row
    v_and_b32 v21, 15, v1
    v_lshlrev_b32 v21, 4, v21
    v_lshl_add_u32 v21, v20, 10, v21
    v_add_u32 v21, {XL}, v21
    v_xor_b32 v22, 64, v21
    v_xor_b32 v23, 128, v21
    v_xor_b32 v26, 192, v21
    """)
    areg = [21, 22, 23, 26]
    for i in range(16):
        a(f'ds_read_b128 {vr(144+4*i,4)}, v{areg[i&3]} offset:{(i>>2)*256}')
    a('v_mov_b32 v28, 0\nv_mov_b32 v29, 0')
    for i in range(16):
        if i % 2 == 0: a(f's_waitcnt lgkmcnt({14-i})')
        for k in range(4):
            r = 144 + 4*i + k
            a(f'v_dot2_f32_bf16 v28, v{r}, s56, v28')
            a(f'v_dot2_f32_bf16 v29, v{r}, v{r}, v29')
    a('v_lshlrev_b32 v20, 4, v20\ns_nop 1')
    for dpp in ('quad_perm:[1,0,3,2]', 'quad_perm:[2,3,0,1]'):
        a(f'v_add_f32_dpp v28, v28, v28 {dpp} row_mask:0xf bank_mask:0xf')
        a(f'v_add_f32_dpp v29, v29, v29 {dpp} row_mask:0xf bank_mask:0xf')
        a('s_nop 0')
    a(f"""
    v_mul_f32 v28, {f32hex(-1/512)}, v28     ; -mean
    v_mul_f32 v29, {f32hex(1/512)}, v29
    v_fma_f32 v29, -v28, v28, v29            ; var
    v_max_f32 v29, 0, v29
    v_add_f32 v29, {f32hex(1e-5)}, v29
    v_sqrt_f32 v30, v29                      ; sd
    v_rsq_f32 v35, v29                       ; rstd
    v_cvt_pk_bf16_f32 v32, v28, v28
    v_and_b32 v31, s57, v32
    v_sub_f32 v28, v28, v31                  ; -mu_lo
    v_cvt_pk_bf16_f32 v33, v28, v30
    v_and_b32 v31, s57, v33
    v_sub_f32 v30, v30, v31
    v_cvt_pk_bf16_f32 v34, v30, 0
    v_add_u32 v20, {STATS}, v20
    ds_write_b128 v20, v[32:35]
    s_branch A_nojob
    A_nostat:
    s_cmp_lg_u32 s{W}, 7
    s_cbranch_scc1 A_nojob
    v_and_b32 v20, 15, v1            ; idx
    v_lshrrev_b32 v21, 4, v1         ; q
    s_lshr_b32 s58, s{J}, 1          ; subtile
    s_lshl_b32 s3, s58, 14
    s_add_u32 s3, s3, {XL}
    v_xor_b32 v22, v20, v21
    v_lshlrev_b32 v22, 4, v22
    v_lshl_add_u32 v22, v20, 10, v22
    v_add_u32 v22, s3, v22
    v_xor_b32 v23, 64, v22
    v_xor_b32 v26, 128, v22
    v_xor_b32 v27, 192, v22
    v_lshlrev_b32 v28, 8, v21
    v_lshl_add_u32 v28, v20, 3, v28
    v_mov_b32 v29, 0
    """)
    areg = [22, 23, 26, 27]
    XF = 144;
    def WF(s): return (96 + 4*s) if s < 3 else (112 + 4*(s-3)) if s < 11 else (36 + 4*(s-11))
    for s in range(16):
        a(f'ds_read_b128 {vr(XF+4*s,4)}, v{areg[s&3]} offset:{(s>>2)*256}')
        for u in range(2):
            a(f'ds_read_b64_tr_b16 {vr(WF(s)+2*u,2)}, v28 offset:{AUXW+s*1024+u*128}')
        if s >= 4:
            pass
    a(f's_bitcmp1_b32 s{J}, 0\ns_cbranch_scc1 A_vjob')
    def unit(isv):
        for s in range(16):
            if s == 0: a('s_waitcnt lgkmcnt(15)')
            if s >= 11: a(f's_waitcnt lgkmcnt({3*(15-s)})')
            c = 'v[56:59]' if s else '0'
            if isv: a(f'v_mfma_f32_16x16x32_bf16 v[56:59], {vr(XF+4*s,4)}, {vr(WF(s),4)}, {c}')
            else:   a(f'v_mfma_f32_16x16x32_bf16 v[56:59], {vr(WF(s),4)}, {vr(XF+4*s,4)}, {c}')
    unit(False)
    a('s_branch A_cs\nA_vjob:')
    unit(True)
    a('A_cs:')
    for s in range(16):
        for k in range(4): a(f'v_dot2_f32_bf16 v29, v{WF(s)+k}, s56, v29')
    a(f"""
    A_nojob:
    s_waitcnt vmcnt({6+nx+nw}) lgkmcnt(0)
    s_barrier
    """)
    stamp(a, 2)
    def reads(F, slot, it4):
        for ks in range(2):
            for u in range(2):
                a(f'ds_read_b64_tr_b16 {vr(F+4*ks+2*u,2)}, v12 offset:{slot*16384+(16*ks+4*u)*128}')
            s = 2*it4 + ks
            for p2 in range(2):
                a(f'ds_read_b128 {vr(F+8+8*ks+4*p2,4)}, v{4+s} offset:{p2*32768}')
    def mfmas(F):
        for ks in range(2):
            for p2 in range(2):
                a(f'v_mfma_f32_32x32x16_bf16 {vr(ACC+16*p2,16)}, {vr(F+4*ks,4)}, {vr(F+8+8*ks+4*p2,4)}, {vr(ACC+16*p2,16)}')
                for k in range(2): a(f'v_dot2_f32_bf16 v16, v{F+4*ks+2*p2+k}, s56, v16')
    reads(F0, 0, 0)
    a(f"""
    s_cmp_lg_u32 s{W}, 7
    s_cbranch_scc1 A_nofin
    s_lshl_b32 s3, s58, 8
    s_add_u32 s3, s3, {STATS}
    v_lshl_add_u32 v30, v20, 4, s3
    v_lshl_add_u32 v31, v21, 6, s3
    ds_read_b128 v[32:35], v30
    ds_read_b32 v40, v31 offset:12
    ds_read_b32 v41, v31 offset:28
    ds_read_b32 v42, v31 offset:44
    ds_read_b32 v43, v31 offset:60
    v_cvt_pk_bf16_f32 v37, v29, 0
    v_lshlrev_b32 v36, 16, v37
    v_sub_f32 v36, v29, v36
    v_cvt_pk_bf16_f32 v36, v29, v36
    v_mov_b32 v38, 0
    v_mov_b32 v39, 0
    s_lshl_b32 s3, s{G}, 1
    s_lshr_b32 s59, s58, 1
    s_add_u32 s59, s59, s3           ; T
    s_and_b32 s58, s58, 1            ; c = st&1
    v_and_b32 v44, 1, v21            ; h
    v_lshrrev_b32 v45, 1, v21
    v_lshlrev_b32 v46, 4, v20
    v_lshl_add_u32 v46, v45, 3, v46  ; idx*16 + (q>>1)*8
    s_waitcnt lgkmcnt(0)
    v_mov_b32 v47, v35
    v_mov_b32 v35, 0
    s_bitcmp1_b32 s{J}, 0
    s_cbranch_scc1 A_vfin
    v_mfma_f32_16x16x32_bf16 v[56:59], v[36:39], v[32:35], v[56:59]
    v_lshl_add_u32 v46, v44, 9, v46
    s_lshl_b32 s3, s58, 8
    v_mov_b32 v40, v47
    v_mov_b32 v41, v47
    v_mov_b32 v42, v47
    v_mov_b32 v43, v47
    s_branch A_kvst
    A_vfin:
    v_mfma_f32_16x16x32_bf16 v[56:59], v[32:35], v[36:39], v[56:59]
    v_lshl_add_u32 v46, v44, 8, v46
    s_lshl_b32 s3, s58, 9
    s_add_u32 s3, s3, 1024
    v_mul_f32 v40, {f32hex(VSC)}, v40
    v_mul_f32 v41, {f32hex(VSC)}, v41
    v_mul_f32 v42, {f32hex(VSC)}, v42
    v_mul_f32 v43, {f32hex(VSC)}, v43
    A_kvst:
    s_lshl_b32 s60, s59, 11
    s_add_u32 s3, s3, s60
    v_mul_f32 v56, v56, v40
    v_mul_f32 v57, v57, v41
    v_mul_f32 v58, v58, v42
    v_mul_f32 v59, v59, v43
    v_cvt_pk_bf16_f32 v56, v56, v57
    v_cvt_pk_bf16_f32 v57, v58, v59
    buffer_store_dwordx2 v[56:57], v46, s[{SWS}:{SWS+3}], s3 offen sc1
    s_and_b32 s3, s59, 7
    s_lshl_b32 s3, s3, 5
    s_lshr_b32 s59, s59, 3
    s_lshl_b32 s59, s59, 2
    s_add_u32 s3, s3, s59
    s_and_b32 s59, s{J}, 3
    s_add_u32 s3, s3, s59
    s_mul_i32 s59, s3, {FS}
    s_add_u32 s59, s59, {WS_FKV}
    A_nofin:
    v_mov_b32 v18, s{TAG}
    v_mov_b32 v19, 0
    s_mov_b32 s60, 3
    s_add_u32 s61, s{W}, 3
    A_loop:
    """)
    for it in range(4):
        cur, nxt = (F0, F1) if it % 2 == 0 else (F1, F0)
        a('s_waitcnt vmcnt(4) lgkmcnt(0)\ns_barrier')
        if it == flag_it:
            a(f"""
            s_cmp_lg_u32 s61, 10
            s_cbranch_scc1 A_noflag
            s_waitcnt vmcnt({2*flag_it})
            buffer_store_dword v18, v19, s[{SWS}:{SWS+3}], s59 offen sc1
            s_mov_b32 s61, 0
            """)
            stamp(a, 3)
            a('A_noflag:')
        dma(it)
        if it == 3:
            for r in range(4, 12): a(f'v_add_u32 v{r}, 256, v{r}')
        reads(nxt, (it+1) & 3, (it+1) & 3)
        mfmas(cur)
    a(f"""
    s_sub_u32 s60, s60, 1
    s_cmp_lg_u32 s60, 0
    s_cbranch_scc1 A_loop
    s_mul_i32 s58, s{W}, {32*FS}
    s_add_u32 s58, s58, {WS_FKV}
    v_mul_u32_u24 v20, {FS}, v13
    s_lshl_b32 s59, s{W}, 11
    """)
    def kvdma(c):
        a(f"""
        s_add_u32 s3, s59, {c*16384}
        s_mov_b32 m0, s3
        s_nop 0
        buffer_load_dwordx4 v2, s[{SWS}:{SWS+3}], s3 offen sc1 lds
        buffer_load_dwordx4 v2, s[{SWS}:{SWS+3}], s3 offen offset:1024 sc1 lds
        """)
    a('s_waitcnt vmcnt(4) lgkmcnt(0)\ns_barrier')
    a(f'buffer_load_dword v21, v20, s[{SWS}:{SWS+3}], s58 offen sc1')
    reads(F1, 1, 1); mfmas(F0)
    a('s_waitcnt vmcnt(0) lgkmcnt(0)\ns_barrier')
    reads(F0, 2, 2); mfmas(F1)
    a(f"""
    s_mov_b32 s14, 0x20000
    A_poll:
    v_cmp_ne_u32 vcc, s{TAG}, v21
    s_cbranch_vccz A_pollok
    s_sub_u32 s14, s14, 1
    s_cbranch_scc1 A_pollok
    buffer_load_dword v21, v20, s[{SWS}:{SWS+3}], s58 offen sc1
    s_waitcnt vmcnt(0)
    s_branch A_poll
    A_pollok:
    """)
    stamp(a, 4)
    kvdma(0); kvdma(1); kvdma(2)
    a('s_waitcnt lgkmcnt(0)\ns_barrier')
    kvdma(3)
    reads(F1, 3, 3); mfmas(F0)
    a('s_waitcnt lgkmcnt(0)\ns_barrier')
    a(f"""
    v_lshlrev_b32 v20, 4, v13
    v_add_u32 v20, {STATS}, v20
    ds_read_b128 v[32:35], v20
    ds_read_b128 v[36:39], v20 offset:512
    """)
    mfmas(F1)
    for c in range(4, 8): kvdma(c)
    a(f"""
    v_cvt_pk_bf16_f32 v41, v16, 0
    v_lshlrev_b32 v40, 16, v41
    v_sub_f32 v40, v16, v40
    v_cvt_pk_bf16_f32 v40, v16, v40
    v_lshl_or_b32 v41, v17, 16, v41
    v_mov_b32 v42, v17                       ; (b, 0)
    v_mov_b32 v43, 0
    s_waitcnt lgkmcnt(0)
    v_mov_b32 v110, v35
    v_mov_b32 v111, v39
    v_mov_b32 v35, 0
    v_mov_b32 v39, 0
    s_nop 1
    v_mfma_f32_32x32x16_bf16 {vr(ACC,16)}, v[40:43], v[32:35], {vr(ACC,16)}
    v_mfma_f32_32x32x16_bf16 {vr(ACC+16,16)}, v[40:43], v[36:39], {vr(ACC+16,16)}
    s_cmp_ge_u32 s{W}, 2
    s_cbranch_scc1 A_h
    v_mul_f32 v44, {f32hex(QSCALE)}, v110
    v_mul_f32 v45, {f32hex(QSCALE)}, v111
    s_lshl_b32 s3, s{W}, 12
    s_add_u32 s3, s3, {QL}
    v_add_u32 v46, s3, v2
    s_nop 6
    """)
    for r in range(32): a(f'v_mul_f32 v{ACC+r}, v{44+(r>>4)}, v{ACC+r}')
    for r in range(16): a(f'v_cvt_pk_bf16_f32 v{48+r}, v{ACC+2*r}, v{ACC+2*r+1}')
    for p2 in range(2):
        for hl in range(2):
            a(f'ds_write_b128 v46, {vr(48+8*p2+4*hl,4)} offset:{(hl*2+p2)*1024}')
    a(f"""
    s_mov_b32 s68, -1
    s_waitcnt vmcnt(14)
    s_branch A_done
    A_h:
    s_cmp_lt_u32 s{J}, 5
    s_cselect_b32 s3, 7, 99
    s_cmp_eq_u32 s{W}, s3
    s_cselect_b32 s68, -1, s68
    s_mul_i32 s3, s{G}, 172
    s_lshl_b32 s58, s68, 1
    s_add_u32 s3, s3, s58
    s_lshl_b32 s3, s3, 10
    s_add_u32 s3, s3, {WS_H}
    s_add_u32 s58, s3, {86*1024}
    s_nop 0
    """)
    for r in range(32): a(f'v_max_f32 v{ACC+r}, 0, v{ACC+r}')
    for r in range(0, 32, 2): a(f'v_pk_mul_f32 {vr(ACC+r,2)}, {vr(ACC+r,2)}, {vr(ACC+r,2)}')
    for r in range(16): a(f'v_cvt_pk_bf16_f32 v{48+r}, v{ACC+2*r}, v{ACC+2*r+1}')
    a(f's_waitcnt vmcnt(14)\ns_cmp_eq_u32 s68, -1\ns_cbranch_scc1 A_done')
    for p2 in range(2):
        for hl in range(2):
            a(f'buffer_store_dwordx4 {vr(48+8*p2+4*hl,4)}, v2, s[{SWS}:{SWS+3}], {"s58" if p2 else "s3"} offen offset:{hl*1024} sc1')
    Q = 4; K = 8; V = 16; P = 32; S = 40; C = 72; O = 88
    AC2 = 128; GA = 192; GB = 200
    a(f"""
    A_done:
    v_and_b32 v3, 15, v1
    v_lshlrev_b32 v3, 4, v3
    v_lshl_add_u32 v3, v14, 8, v3
    v_add_u32 v3, 1024, v3
    v_and_b32 v104, 27, v1
    v_cmp_eq_u32 vcc, 16, v104
    v_mov_b32 v105, 0x4b804b80
    s_lshl_b32 s3, s{W}, 10
    s_add_u32 s3, s3, {QL}
    v_cndmask_b32 v104, 0, v105, vcc
    v_add_u32 v105, s3, v2
    s_mov_b32 s56, 0x0000ffff
    s_mov_b32 s57, 0x0000ffff
    s_mov_b32 s58, 0
    v_mov_b32 v112, s{TAG}
    """)
    for r in range(16): a(f'v_mov_b32 v{V+r}, v104')
    a(f"""
    s_waitcnt lgkmcnt(0)
    s_barrier
    """)
    stamp(a, 5)
    a(f"""
    ds_read_b128 {vr(Q,4)}, v105
    ds_read_b128 {vr(K,4)}, v2
    """)
    srd(a, SW, 20, 1409024)
    a(f"""
    s_lshl_b32 s64, s{W}, 12
    s_add_u32 s64, s64, {STG}
    s_bfe_u32 s3, s{W}, 0x10001      ; t_aa = (w>>1)&1
    s_lshl_b32 s3, s3, 6
    v_xor_b32 v109, s3, v109
    v_add_u32 v113, s64, v109
    v_xor_b32 v114, 64, v113
    s_and_b32 s3, s{W}, 1            ; t_p2
    s_lshl_b32 s65, s{G}, 1
    s_add_u32 s65, s65, s3
    s_xor_b32 s66, s65, 1
    s_mul_i32 s65, s65, {86*1024}
    s_mul_i32 s66, s66, {86*1024}
    s_add_u32 s65, s65, {WS_H}
    s_add_u32 s66, s66, {WS_H}
    s_mov_b32 s67, s{W}
    s_waitcnt lgkmcnt(0)
    v_mfma_f32_32x32x16_bf16 {vr(S,16)}, {vr(K,4)}, {vr(Q,4)}, 0
    """)
    for r in range(0, 64, 2): a(f'v_pk_mov_b32 {vr(AC2+r,2)}, 0, 0') if False else None
    for r in range(64): a(f'v_mov_b32 v{AC2+r}, 0')
    a(f'v_max3_f32 v104, v{S}, v{S+1}, v{S+2}')
    for r in range(3, 15, 2): a(f'v_max3_f32 v104, v104, v{S+r}, v{S+r+1}')
    a(f"""
    v_max_f32 v104, v104, v{S+15}
    v_add_f32 v104, {f32hex(OFF)}, v104
    s_mov_b32 s59, 4
    B_setc:
    v_mov_b32 v105, v104
    v_mov_b32 v106, v2
    v_mov_b32 v107, v3
    v_permlane32_swap_b32 v104, v105
    ds_read_b128 {vr(K,4)}, v106
    ds_read_b128 {vr(K+4,4)}, v106 offset:2048
    s_mov_b64 exec, s[56:57]
    ds_read_b128 {vr(V,4)}, v107
    ds_read_b128 {vr(V+4,4)}, v107 offset:512
    s_mov_b64 exec, -1
    v_max_f32 v104, v104, v105
    """)
    for r in range(16): a(f'v_sub_f32 v{C+r}, 0, v104')
    for r in range(4, 8): a(f'v_mov_b32 v{P+r}, 0')
    a(f"""
    s_waitcnt lgkmcnt(3)
    v_mfma_f32_32x32x16_bf16 {vr(S,16)}, {vr(K,4)}, {vr(Q,4)}, {vr(C,16)}
    """)
    for r in range(16): a(f'v_mov_b32 v{O+r}, 0')
    a(f's_cmp_ge_u32 s{W}, 4\ns_cselect_b64 vcc, -1, 0')
    cnt = [0]
    def setprio(p):
        cnt[0] += 1
        a(f's_cbranch_vccz B_sp{cnt[0]}\ns_setprio {p}\nB_sp{cnt[0]}:')
    def tile(t, U, ins):
        cur = S + 16*(t & 1); nxt = S + 16*((t+1) & 1)
        Kn = K + 4*((t+1) & 1); Kl = K + 4*(t & 1)
        Vc = V + 8*(t & 1); Vn = V + 8*((t+1) & 1)
        def x(pos):
            for s_ in ins.get(pos, []): a(s_)
        if prio == 'y31':
            if t % 4 == 0: setprio(1)
            if t % 4 == 3: setprio(0)
        for r in range(0, 2): a(f'v_exp_f32 v{cur+r}, v{cur+r}')
        a(f'v_mfma_f32_32x32x16_bf16 {vr(O,16)}, {vr(Vn+4,4)}, {vr(P+4,4)}, {vr(O,16)}')
        for r in range(2, 4): a(f'v_exp_f32 v{cur+r}, v{cur+r}')
        a('s_waitcnt lgkmcnt(0)')
        a(f's_mov_b64 exec, s[56:57]')
        a(f'ds_read_b128 {vr(Vn,4)}, v107 offset:{(t+1)*2048}')
        a(f'ds_read_b128 {vr(Vn+4,4)}, v107 offset:{(t+1)*2048+512}')
        a(f's_mov_b64 exec, -1')
        x('a')
        for r in range(4, 7): a(f'v_exp_f32 v{cur+r}, v{cur+r}')
        a(f'v_mfma_f32_32x32x16_bf16 {vr(nxt,16)}, {vr(Kn,4)}, {vr(Q,4)}, {vr(C,16)}')
        a(f'ds_read_b128 {vr(Kl,4)}, v106 offset:{(t+2)*2048}')
        x('b')
        for r in range(7, 9): a(f'v_exp_f32 v{cur+r}, v{cur+r}')
        for r in range(4): a(f'v_cvt_pk_bf16_f32 v{P+r}, v{cur+2*r}, v{cur+2*r+1}')
        for r in range(9, 11): a(f'v_exp_f32 v{cur+r}, v{cur+r}')
        a(f'v_mfma_f32_32x32x16_bf16 {vr(O,16)}, {vr(Vc,4)}, {vr(P,4)}, {vr(O,16)}')
        for r in range(11, 15): a(f'v_exp_f32 v{cur+r}, v{cur+r}')
        x('c')
        a(f'v_exp_f32 v{cur+15}, v{cur+15}')
        for r in range(4, 8): a(f'v_cvt_pk_bf16_f32 v{P+r}, v{cur+2*r}, v{cur+2*r+1}')
        if t == U-1:
            a(f'v_add_u32 v106, {U*2048}, v106\nv_add_u32 v107, {U*2048}, v107')
    a('.p2align 6\nB_loop1:')
    for t in range(4): tile(t, 4, {})
    a(f"""
    s_sub_u32 s59, s59, 1
    s_cmp_lg_u32 s58, 0
    s_cbranch_scc1 B_nohook
    s_cmp_eq_u32 s59, 3
    s_cbranch_scc1 B_hook0
    s_cmp_eq_u32 s59, 1
    s_cbranch_scc1 B_hook2
    B_nohook:
    s_cmp_lg_u32 s59, 0
    s_cbranch_scc1 B_loop1
    s_cmp_lg_u32 s58, 0
    s_cbranch_scc1 B_post
    s_branch B_main
    B_hook0:
    s_waitcnt vmcnt(0)
    s_barrier
    s_lshl_b32 s3, s{G}, 6
    s_add_u32 s3, s3, s68
    s_lshl_b32 s3, s3, 2
    s_add_u32 s3, s3, {WS_FH}
    s_add_u32 s60, s2, s{W}
    s_cmp_eq_u32 s60, 0
    s_cselect_b32 s3, {WS_EP}, s3
    s_cselect_b32 s68, 0, s68
    s_cmp_eq_u32 s68, -1
    s_cbranch_scc1 B_loop1
    v_mov_b32 v116, 0
    buffer_store_dword v112, v116, s[{SWS}:{SWS+3}], s3 offen sc1
    s_branch B_loop1
    B_hook2:
    s_mov_b32 s14, 0x20000
    v_min_u32 v116, 42, v1
    v_lshlrev_b32 v116, 2, v116
    s_lshl_b32 s60, s{G}, 8
    s_add_u32 s60, s60, {WS_FH}
    buffer_load_dword v115, v116, s[{SWS}:{SWS+3}], s60 offen sc1
    s_branch B_loop1
    B_main:
    s_waitcnt vmcnt(0)
    v_cmp_ne_u32 s[62:63], s{TAG}, v115
    s_cmp_eq_u64 s[62:63], 0
    s_cbranch_scc1 B_hok
    s_sub_u32 s14, s14, 1
    s_cbranch_scc1 B_hok
    buffer_load_dword v115, v116, s[{SWS}:{SWS+3}], s60 offen sc1
    s_branch B_main
    B_hok:
    """)
    stamp(a, 8)
    def g2loads(st):
        return [f"""
        s_lshl_b32 s3, s67, 14
        s_add_u32 m0, s64, {st*2048}
        s_min_u32 s61, s67, 85
        buffer_load_dwordx4 v108, s[{SW}:{SW+3}], s3 offen lds
        s_add_u32 s3, s3, 8192
        s_add_u32 m0, s64, {st*2048+1024}
        s_lshl_b32 s61, s61, 10
        buffer_load_dwordx4 v108, s[{SW}:{SW+3}], s3 offen lds
        """, f"""
        s_add_u32 s3, s61, s65
        s_add_u32 s61, s61, s66
        buffer_load_dwordx4 {vr(GB+8*st,4)}, v2, s[{SWS}:{SWS+3}], s3 offen sc1
        buffer_load_dwordx4 {vr(GB+8*st+4,4)}, v2, s[{SWS}:{SWS+3}], s61 offen sc1
        s_add_u32 s67, s67, 8
        """]
    for s_ in g2loads(0): a(s_)
    a('s_mov_b32 s59, 6\n.p2align 6\nB_loop2:')
    for t in range(8):
        st = t >> 2
        ins = {}
        def gm(i): return f'v_mfma_f32_32x32x16_bf16 {vr(AC2+16*i,16)}, {vr(GA+4*(i>>1),4)}, {vr(GB+8*st+4*(i&1),4)}, {vr(AC2+16*i,16)}'
        if t % 4 == 0:
            ins['a'] = ['s_waitcnt vmcnt(0)'] + [f'ds_read_b64_tr_b16 {vr(GA+4*aa+2*u,2)}, v{113+aa} offset:{st*2048+u*1024}' for aa in range(2) for u in range(2)]
            l = g2loads(st ^ 1)
            ins['b'] = [l[0]]; ins['c'] = [l[1]]
        elif t % 4 == 1: ins['c'] = [gm(0)]
        elif t % 4 == 2: ins['a'] = [gm(1)]; ins['c'] = [gm(2)]
        else: ins['c'] = [gm(3)]
        tile(t, 8, ins)
    a(f"""
    s_sub_u32 s59, s59, 1
    s_cmp_lg_u32 s59, 0
    s_cbranch_scc1 B_loop2
    B_post:
    s_setprio 0
    v_mfma_f32_32x32x16_bf16 {vr(O,16)}, {vr(V+12,4)}, {vr(P+4,4)}, {vr(O,16)}
    """)
    stamp(a, 9)
    srd(a, SKV, 12, 524288)
    srd(a, SB, 22, 1024)
    srd(a, SOUT, 24, 2097152)
    a(f"""
    s_waitcnt lgkmcnt(0)
    v_mov_b32 v104, v{O+8}
    """)
    for r in range(8): a(f'v_fma_f32 v104, v{O+r}, 0, v104')
    a(f"""
    s_mov_b32 s3, {f32hex(2.0**120)}
    v_cmp_gt_f32 vcc, s3, v104
    v_rcp_f32 v104, v{O+8}
    s_cmp_lg_u32 s58, 0
    s_cbranch_scc1 B_fin
    s_cmp_eq_u64 vcc, -1
    s_cbranch_scc1 B_fin
    s_mov_b32 s58, 1
    s_mov_b32 s59, 64
    v_mov_b32 v106, v2
    v_mov_b32 v104, 0xff800000
    B_mx:
    ds_read_b128 {vr(K,4)}, v106
    v_add_u32 v106, 2048, v106
    s_waitcnt lgkmcnt(0)
    v_mfma_f32_32x32x16_bf16 {vr(S,16)}, {vr(K,4)}, {vr(Q,4)}, 0
    s_nop 11
    """)
    for r in range(0, 16, 2): a(f'v_max3_f32 v104, v104, v{S+r}, v{S+r+1}')
    a(f"""
    s_sub_u32 s59, s59, 1
    s_cmp_lg_u32 s59, 0
    s_cbranch_scc1 B_mx
    s_mov_b32 s59, 16
    s_branch B_setc
    B_fin:
    """)
    for r in range(8): a(f'v_mul_f32 v{O+r}, v104, v{O+r}')
    for r in range(4): a(f'v_cvt_pk_bf16_f32 v{P+r}, v{O+2*r}, v{O+2*r+1}')
    for r in range(4): a(f'v_min_u32 v{P+r}, -2, v{P+r}')
    a(f'buffer_store_dwordx4 {vr(P,4)}, v2, s[{SWS}:{SWS+3}], s69 offen sc1')
    OB = 4
    WA = 192
    a(f"""
    s_lshr_b32 s60, s{W}, 2          ; kappa
    s_and_b32 s61, s{W}, 1           ; p2
    s_bfe_u32 s62, s{W}, 0x10001     ; aa
    s_lshl_b32 s63, s{G}, 1
    s_add_u32 s63, s63, s61          ; postile
    s_lshl_b32 s64, s63, 15
    s_lshl_b32 s65, s{J}, 7
    s_lshl_b32 s3, s62, 6
    s_add_u32 s65, s65, s3
    s_lshl_b32 s3, s60, 5
    s_add_u32 s65, s65, s3
    v_lshrrev_b32 v116, 5, v1
    v_lshlrev_b32 v116, 3, v116
    v_add_u32 v116, s65, v116
    v_and_b32 v117, 31, v1
    v_lshl_add_u32 v117, v117, 10, v116
    buffer_load_dwordx2 v[118:119], v117, s[{SX}:{SX+3}], s64 offen
    buffer_load_dwordx2 v[120:121], v117, s[{SX}:{SX+3}], s64 offen offset:16
    buffer_load_dwordx2 v[122:123], v116, s[{SB}:{SB+3}], 0 offen
    buffer_load_dwordx2 v[124:125], v116, s[{SB}:{SB+3}], 0 offen offset:16
    s_cmp_eq_u32 s61, 0
    s_cselect_b64 vcc, -1, 0
    s_lshl_b32 s66, s63, 5
    s_lshl_b32 s3, s60, 4
    v_cndmask_b32 v110, v111, v110, vcc
    s_add_u32 s66, s66, s3
    s_lshl_b32 s66, s66, 10
    s_add_u32 s66, s66, {WS_O}
    v_mul_f32 v110, v110, v110       ; rstd^2
    s_lshl_b32 s3, s{W}, 16
    s_lshl_b32 s67, s{W}, 13
    s_add_u32 s67, s67, {WOL}
    s_waitcnt vmcnt(5)
    s_barrier
    """)
    stamp(a, 10)
    for i in range(8):
        a(f"""
        s_mov_b32 m0, s67
        s_add_u32 s67, s67, 1024
        buffer_load_dwordx4 v108, s[{SKV}:{SKV+3}], s3 offen lds
        s_add_u32 s3, s3, 8192
        """)
    for i in range(1, 4):
        a(f"""
        s_xor_b32 s3, s{W}, {i}
        s_mul_i32 s3, s3, 12288
        v_add_u32 v126, s3, v2
        """)
        for q in range(4):
            a(f'ds_write_b128 v126, {vr(AC2+16*i+4*q,4)} offset:{(i-1)*4096+q*1024}')
    a(f"""
    s_mul_i32 s3, s{W}, 12288
    v_add_u32 v126, s3, v2
    s_lshl_b32 s3, s60, 15
    s_add_u32 s3, s3, {WOL}
    v_add_u32 v127, s3, v109
    s_waitcnt vmcnt(0) lgkmcnt(0)
    s_barrier
    """)
    stamp(a, 11)
    def oloads():
        a('s_mov_b32 s3, s66')
        for i in range(16):
            if i and i % 4 == 0: a('s_add_u32 s3, s3, 4096')
            a(f'buffer_load_dwordx4 {vr(OB+4*i,4)}, v2, s[{SWS}:{SWS+3}], s3 offen offset:{(i&3)*1024} sc1')
    oloads()
    for q in range(12):
        a(f'ds_read_b128 {vr(AC2+16+4*q,4)}, v126 offset:{q*1024}')
    a('s_waitcnt lgkmcnt(0)')
    for c in range(16):
        for u in range(2):
            a(f'ds_read_b64_tr_b16 {vr(WA+4*c+2*u,2)}, v127 offset:{c*2048+u*1024}')
    for r in range(16):
        a(f'v_add_f32 v{AC2+r}, v{AC2+r}, v{AC2+16+r}')
        a(f'v_add_f32 v{AC2+32+r}, v{AC2+32+r}, v{AC2+48+r}')
    for r in range(16): a(f'v_add_f32 v{AC2+r}, v{AC2+r}, v{AC2+32+r}')
    for r in range(16): a(f'v_mul_f32 v{AC2+r}, v110, v{AC2+r}')
    a('s_mov_b32 s57, 0xffff0000')
    for k in range(4):
        a(f'v_lshlrev_b32 v{72+2*k}, 16, v{118+k}')
        a(f'v_and_b32 v{73+2*k}, s57, v{118+k}')
        a(f'v_lshlrev_b32 v{80+2*k}, 16, v{122+k}')
        a(f'v_and_b32 v{81+2*k}, s57, v{122+k}')
    for k in range(8): a(f'v_add_f32 v{72+k}, v{72+k}, v{80+k}')
    D = AC2 + 16
    a('s_mov_b32 s14, 0x20000\ns_waitcnt lgkmcnt(0)\nC_try:\nv_mov_b32 v104, 0')
    for i in range(16):
        a(f's_waitcnt vmcnt({15-i})')
        a(f'v_mfma_f32_32x32x16_bf16 {vr(D,16)}, {vr(WA+4*i,4)}, {vr(OB+4*i,4)}, {vr(D if i else AC2,16)}')
        a(f'v_max3_u32 v104, v104, v{OB+4*i}, v{OB+4*i+1}')
        a(f'v_max3_u32 v104, v104, v{OB+4*i+2}, v{OB+4*i+3}')
    a(f"""
    v_cmp_eq_u32 vcc, -1, v104
    s_cbranch_vccz C_ok
    s_sub_u32 s14, s14, 1
    s_cbranch_scc1 C_ok
    """)
    oloads()
    a(f"""
    s_branch C_try
    C_ok:
    """)
    stamp(a, 12)
    a(f"""
    s_xor_b32 s3, s{W}, 4
    s_mul_i32 s3, s3, 12288
    v_add_u32 v127, s3, v2
    s_cmp_eq_u32 s60, 0
    s_nop 4
    s_cbranch_scc1 C_k0
    ds_write_b128 v126, {vr(D,4)}
    ds_write_b128 v126, {vr(D+4,4)} offset:1024
    """)
    for k in range(8): a(f'v_add_f32 v{72+k}, v{72+k}, v{D+8+k}')
    a(f"""
    s_branch C_x
    C_k0:
    ds_write_b128 v126, {vr(D+8,4)}
    ds_write_b128 v126, {vr(D+12,4)} offset:1024
    """)
    for k in range(8): a(f'v_add_f32 v{72+k}, v{72+k}, v{D+k}')
    a(f"""
    C_x:
    s_waitcnt lgkmcnt(0)
    s_barrier
    ds_read_b128 v[80:83], v127
    ds_read_b128 v[84:87], v127 offset:1024
    s_waitcnt lgkmcnt(0)
    """)
    for k in range(8): a(f'v_add_f32 v{72+k}, v{72+k}, v{80+k}')
    for k in range(4): a(f'v_cvt_pk_bf16_f32 v{80+k}, v{72+2*k}, v{73+2*k}')
    a(f'buffer_store_dwordx2 v[80:81], v117, s[{SOUT}:{SOUT+3}], s64 offen')
    a(f'buffer_store_dwordx2 v[82:83], v117, s[{SOUT}:{SOUT+3}], s64 offen offset:16')
    if common.STAMP: a('s_waitcnt vmcnt(0)')
    stamp(a, 13); stamp(a, 7, True); stamp_dump(a, 14, 0, ws=26, wave=W)
    a('L_end:\ns_endpgm')
    a(kd(name, 256, 100, 256))

def build(**kw):
    a = Asm()
    gen(a, **kw)
    head = HEADER + """; @launch grid=(256,1,1) block=(512,1,1) lds=163840
.amdgcn_target "amdgcn-amd-amdhsa--gfx950"
.text
"""
    return head + a.text()

if __name__ == '__main__':
    common.STAMP = len(sys.argv) > 2
    txt = build()
    out = sys.argv[1] if len(sys.argv) > 1 else f'cdna_kernels/{NAME}.s'
    open(out, 'w').write(txt)
    hazard.check(txt)
```

```python
import sys, importlib, common, hazard
modn = sys.argv[1]
mod = importlib.import_module(modn)
for spec in sys.argv[2:]:
    nm, _, kv = spec.partition(':')
    kw = {}
    st = True
    for it in filter(None, kv.split(',')):
        k, v = it.split('=')
        if k == 'stamp': st = bool(int(v)); continue
        try: v = eval(v)
        except Exception: pass
        kw[k] = v
    common.STAMP = st
    txt = mod.build(**kw)
    open(f'dev/{nm}.s', 'w').write(txt)
    print(nm, end=' '); hazard.check(txt)
```

```python
import math
NAME = "parallel_sum__grouped_kv_mqa__dense_activation_squared_relu__prompt"
HEADER = """; Kernarg layout for this problem (104 bytes, ptrs only, base s[0:1]):
"""

class Asm:
    def __init__(self):
        self.lines = []
        self.vm = []
        self.ntok = 0
    def __call__(self, s):
        for ln in s.strip('\n').split('\n'):
            ln = ln.strip()
            if not ln: continue
            if ln.endswith(':') or ln.startswith('.'): self.lines.append(ln)
            else: self.lines.append('    ' + ln)
    def label(self, l): self.lines.append(l + ':')
    def c(self, s): self.lines.append('    ; ' + s)
    def vmem(self, s):
        self(s)
        self.ntok += 1
        self.vm.append(self.ntok)
        return self.ntok
    def vwait(self, tok, extra=''):
        if tok not in self.vm:
            if extra: self('s_waitcnt ' + extra)
            return
        i = self.vm.index(tok)
        n = len(self.vm) - 1 - i
        assert n <= 63
        self(f's_waitcnt vmcnt({n}) {extra}'.strip())
        self.vm = self.vm[i + 1:]
    def vreset(self): self.vm = []
    def text(self): return '\n'.join(self.lines) + '\n'

def vr(b, n=1):
    return f'v{b}' if n == 1 else f'v[{b}:{b+n-1}]'
def ar(b, n=1):
    return f'a{b}' if n == 1 else f'a[{b}:{b+n-1}]'
def sr(b, n=1):
    return f's{b}' if n == 1 else f's[{b}:{b+n-1}]'

def f32hex(x):
    import struct
    return '0x%08x' % struct.unpack('<I', struct.pack('<f', x))[0]

def srd(a, d, base, nbytes):
    a(f's_mov_b32 s{d}, s{base}')
    a(f's_and_b32 s{d+1}, s{base+1}, 0xffff')
    a(f's_mov_b32 s{d+2}, {nbytes}')
    a(f's_mov_b32 s{d+3}, 0x00020000')

def kernel_begin(a, name):
    a(f'.globl {name}\n.p2align 8\n.type {name},@function\n{name}:')

def kd(name, nv, ns, acc):
    return f""".section .rodata,"a"
.p2align 6
.amdhsa_kernel {name}
  .amdhsa_next_free_vgpr {nv}
  .amdhsa_next_free_sgpr {ns}
  .amdhsa_accum_offset {acc}
  .amdhsa_group_segment_fixed_size 0
  .amdhsa_kernarg_size 104
  .amdhsa_user_sgpr_count 2
  .amdhsa_user_sgpr_kernarg_segment_ptr 1
  .amdhsa_system_sgpr_workgroup_id_x 1
.end_amdhsa_kernel
.text
"""
WS_KV = 0
WS_Q  = 0x40000
WS_O  = WS_Q + 0x200000
WS_H  = WS_O + 0x200000
WS_FL = WS_H + 64 * 86 * 1024
WS_EP = WS_FL
WS_FH = WS_FL + 0x20000
WS_FKV = WS_FL + 0x4000
WS_ST = WS_FL + 0x18000
WS_END = WS_FL + 0x40000
QSCALE = 0.25 * math.log2(math.e)

STAMP = False
STAMP_OFF = 64 << 20
def stamp(a, i, cyc=False):
    import common
    if not common.STAMP: return
    a(f's_{"memtime" if cyc else "memrealtime"} s[{70+2*i}:{71+2*i}]')
def stamp_dump(a, n, kslot=0, ws=16, wave=46, nw=8):
    import common
    if not common.STAMP: return
    a(f"""
    s_waitcnt lgkmcnt(0)
    s_mov_b32 s60, s{ws}
    s_and_b32 s61, s{ws+1}, 0xffff
    s_mov_b32 s62, 0x10000000
    s_mov_b32 s63, 0x00020000
    s_mul_i32 s3, s2, {nw}
    s_add_u32 s3, s3, s{wave}
    s_lshl_b32 s3, s3, 6
    s_add_u32 s3, s3, {STAMP_OFF + kslot * 0x100000}
    v_mov_b32 v0, 0
    """)
    for i in range(n):
        a(f'v_mov_b32 v1, s{70+2*i}\nbuffer_store_dword v1, v0, s[60:63], s3 offen offset:{4*i}\ns_nop 1')
```

```python
import re, sys

TRANS = ('v_exp_f32','v_log_f32','v_rcp_f32','v_rsq_f32','v_sqrt_f32','v_sin_f32','v_cos_f32','v_rcp_iflag_f32','v_exp_f16','v_rcp_f16')

def regs_of(tok):
    tok = tok.strip()
    tok = re.sub(r'^-', '', tok)
    m = re.fullmatch(r'abs\((.*)\)', tok) or re.fullmatch(r'\|(.*)\|', tok)
    if m: tok = m.group(1)
    m = re.fullmatch(r'([vas])(\d+)', tok)
    if m: return [(m.group(1), int(m.group(2)))]
    m = re.fullmatch(r'([vas])\[(\d+):(\d+)\]', tok)
    if m: return [(m.group(1), i) for i in range(int(m.group(2)), int(m.group(3)) + 1)]
    if tok in ('vcc', 'vcc_lo', 'vcc_hi'): return [('x', 'vcc')]
    if tok in ('exec', 'exec_lo', 'exec_hi'): return [('x', 'exec')]
    if tok == 'm0': return [('x', 'm0')]
    return []

class Ins:
    def __init__(self, text, idx):
        self.text = text; self.idx = idx
        t = text.split(';')[0].strip()
        parts = t.split(None, 1)
        self.op = parts[0]
        rest = parts[1] if len(parts) > 1 else ''
        ops = []; cur = ''; d = 0
        for ch in rest:
            if ch in '[(': d += 1
            if ch in '])': d -= 1
            if ch == ',' and d == 0: ops.append(cur.strip()); cur = ''
            else: cur += ch
        if cur.strip(): ops.append(cur.strip())
        mods = ''
        if ops:
            sp = ops[-1].split(None, 1)
            if len(sp) > 1 and not ops[-1].startswith('abs('):
                ops[-1] = sp[0]; mods = sp[1]
        self.ops = ops; self.mods = mods
        op = self.op
        self.is_mfma = op.startswith('v_mfma') or op.startswith('v_smfmac')
        self.is_valu = op.startswith('v_') and not self.is_mfma
        self.is_vmem = op.startswith(('buffer_', 'global_', 'flat_'))
        self.is_ds = op.startswith('ds_')
        self.is_salu = op.startswith('s_')
        self.is_trans = any(op.startswith(x) for x in TRANS)
        self.is_dpp = 'dpp' in op or any(k in mods for k in ('quad_perm', 'row_shr', 'row_shl', 'row_ror', 'row_mirror', 'row_half_mirror', 'row_bcast', 'row_newbcast', 'wave_'))
        self.is_permlane = op.startswith('v_permlane')
        self.is_lds_dma = self.is_vmem and (re.search(r'\blds\b', mods) is not None or '_lds_' in op)
        R = [regs_of(o) for o in ops]
        self.w = []; self.r = []
        self.srcA = self.srcB = self.srcC = []
        if self.is_mfma:
            self.w = R[0]; self.srcA = R[1]; self.srcB = R[2]; self.srcC = R[3] if not op.startswith('v_smfmac') else R[0]
            self.r = R[1] + R[2] + R[3]
            self.passes = 8 if '32x32' in op else (2 if '4x4x4' in op else 4)
        elif self.is_valu:
            if op.startswith('v_cmp'):
                self.w = R[0]; self.r = sum(R[1:], [])
                if op.startswith('v_cmpx'): self.w = self.w + [('x', 'exec')]
            elif op.startswith(('v_add_co', 'v_sub_co', 'v_addc_co', 'v_subb_co', 'v_subrev_co', 'v_mad_u64')):
                self.w = R[0] + R[1]; self.r = sum(R[2:], [])
            elif self.is_permlane and 'swap' in op:
                self.w = R[0] + R[1]; self.r = R[0] + R[1]
            elif op == 'v_nop': pass
            else:
                self.w = R[0]; self.r = sum(R[1:], [])
                if op.startswith(('v_fmac', 'v_mac', 'v_dot2c', 'v_pk_fmac')) or 'UNUSED_PRESERVE' in mods or self.is_dpp or op.startswith('v_writelane'):
                    self.r = self.r + R[0]
                if op.startswith('v_cndmask') and len(ops) == 3: self.r = self.r + [('x', 'vcc')]
        elif self.is_vmem:
            if 'store' in op or ('atomic' in op):
                self.r = sum(R, [])
                if op.startswith('buffer_'): self.data = R[0]
                else: self.data = R[1] if len(R[0]) and 'atomic' not in op or True else []
                if 'atomic' in op and 'sc0' in mods: self.w = R[0]
            elif self.is_lds_dma:
                self.r = sum(R, []) + [('x', 'm0')]
            elif op.startswith(('buffer_inv', 'buffer_wbl2')): pass
            else:
                self.w = R[0]; self.r = sum(R[1:], [])
        elif self.is_ds:
            if op.startswith(('ds_read', 'ds_bpermute', 'ds_permute', 'ds_swizzle')) or '_rtn' in op:
                self.w = R[0]; self.r = sum(R[1:], [])
            else:
                self.r = sum(R, [])
        elif self.is_salu:
            if op.startswith(('s_cmp', 's_cbranch', 's_branch', 's_waitcnt', 's_barrier', 's_nop', 's_endpgm', 's_setprio', 's_sleep', 's_bitcmp')):
                self.r = sum(R, [])
            else:
                self.w = R[0] if R else []; self.r = sum(R[1:], [])
                if 'saveexec' in op: self.w = self.w + [('x', 'exec')]
        self.states = 1
        if op == 's_nop': self.states = int(ops[0], 0) + 1
        self.wide_store = self.is_vmem and 'store' in op and ('x3' in op or 'x4' in op)

def need(p, c):
    n = 0
    pw = set(p.w); cr = set(c.r); cw = set(c.w)
    vec = lambda s: {x for x in s if x[0] in 'va'}
    if p.is_valu and not p.op.startswith('v_dot'):
        if c.is_mfma and vec(pw) & cr: n = max(n, 2)
    if p.is_valu and p.op.startswith('v_dot'):
        if vec(pw) & (cr | cw):
            if c.op == p.op:
                srcs = set(sum([regs_of(o) for o in c.ops[1:3]], []))
                if vec(pw) & srcs: n = max(n, 3)
            else: n = max(n, 3)
    if p.is_valu:
        if p.is_trans and c.is_valu and not c.is_trans and vec(pw) & cr: n = max(n, 1)
        if p.is_trans and c.is_mfma and vec(pw) & cr: n = max(n, 2)
        sw = {x for x in pw if x[0] == 's' or x == ('x', 'vcc')}
        if sw & cr:
            if c.is_vmem: n = max(n, 5)
            if c.is_valu:
                n = max(n, 4 if c.op.startswith(('v_readlane', 'v_writelane', 'v_div_fmas')) else 2)
        if vec(pw) & cr:
            if c.is_dpp: n = max(n, 2)
            if c.is_permlane: n = max(n, 2)
            if c.op.startswith(('v_readlane', 'v_readfirstlane')): n = max(n, 1)
        if ('x', 'exec') in pw:
            if c.is_dpp: n = max(n, 5)
            if c.is_mfma or c.is_permlane or c.op.startswith(('v_readlane', 'v_readfirstlane', 'v_writelane')): n = max(n, 4)
        if ('sdwa' in p.op or 'op_sel' in p.mods) and not p.op.startswith('v_pk') and c.is_valu and vec(pw) & (cr | cw): n = max(n, 1)
    if p.is_mfma:
        P = p.passes
        D = set(p.w)
        if c.is_mfma:
            if D & (set(c.srcA) | set(c.srcB)): n = max(n, {2: 5, 4: 8, 8: 12}[P])
            if D & set(c.srcC):
                if not (list(c.srcC) == list(p.w) and c.passes == P): n = max(n, {2: 4, 4: 6, 8: 10}[P])
                elif P == 2: n = max(n, 2)
            elif D & set(c.w):
                if not (list(c.w) == list(p.w) and c.passes == P): n = max(n, {2: 4, 4: 6, 8: 10}[P])
        elif (c.is_valu or c.is_vmem or c.is_ds) and D & (cr | cw):
            n = max(n, {2: 5, 4: 8, 8: 12}[P])
        if c.is_valu and set(p.srcC) & cw: n = max(n, {2: 1, 4: 3, 8: 7}[P])
        if (c.is_ds or c.is_vmem) and set(p.srcC) & cw: n = max(n, {2: 1, 4: 3, 8: 7}[P])
    if p.is_salu and ('x', 'm0') in pw and (c.is_lds_dma or 'addtid' in c.op): n = max(n, 1)
    if p.wide_store and set(p.data) & cw: n = max(n, 2 if c.is_valu else 1)
    return n

def check(asm_text, verbose=True):
    lines = asm_text.split('\n')
    ins = []; labels = {}
    intext = True
    for ln in lines:
        t = ln.split(';')[0].strip()
        if not t: continue
        if t.startswith('.section') or t.startswith('.amdhsa_kernel'): intext = False
        if t == '.text': intext = True; continue
        if t.startswith('.') and not t.endswith(':'): continue
        if not intext: continue
        if t.endswith(':'):
            labels[t[:-1]] = len(ins); continue
        ins.append(Ins(t, len(ins)))
    def succ(i):
        x = ins[i]
        if x.op == 's_endpgm': return []
        if x.op == 's_branch': return [labels[x.ops[0]]]
        if x.op.startswith('s_cbranch'): return [labels[x.ops[0]], i + 1]
        return [i + 1] if i + 1 < len(ins) else []
    errs = []
    MAXD = 13
    for i, p in enumerate(ins):
        if not (p.is_valu or p.is_mfma or p.wide_store or (p.is_salu and ('x', 'm0') in p.w)): continue
        stack = [(s, 0) for s in succ(i)]
        seen = {}
        while stack:
            j, dist = stack.pop()
            if j >= len(ins) or dist >= MAXD: continue
            if seen.get(j, 99) <= dist: continue
            seen[j] = dist
            c = ins[j]
            n = need(p, c)
            if n > dist: errs.append((p, c, n, dist))
            for s in succ(j): stack.append((s, dist + c.states))
    if verbose:
        for p, c, n, d in errs[:40]:
            print(f"HAZARD need {n} have {d}:\n    [{p.idx}] {p.text}\n    [{c.idx}] {c.text}")
        print(f"hazard check: {len(ins)} instrs, {len(errs)} violations")
    return errs

if __name__ == '__main__':
    check(open(sys.argv[1]).read())
```
